```python
import torch

def _softmax(x, axis=-1):
    return torch.softmax(x, dim=axis)
def _gelu(x):
    return torch.nn.functional.gelu(x, approximate="tanh")
def _silu(x):
    return torch.nn.functional.silu(x)
def _sigmoid(x):
    return torch.sigmoid(x)
def _layernorm(x, axis=-1, eps=1e-5):
    m = x.mean(dim=axis, keepdim=True)
    v = x.var(dim=axis, keepdim=True, unbiased=False)
    return (x - m) / torch.sqrt(v + eps)
def _scatter_add(tgt, idx, src, axis=0):
    return tgt.clone().index_add_(axis, idx, src)
def _segment_sum(src, seg, n):
    out = torch.zeros((n,) + src.shape[1:], dtype=src.dtype)
    return out.index_add_(0, seg, src)
def _pad(x, pw):
    flat = tuple(v for pair in reversed(pw) for v in pair)
    return torch.nn.functional.pad(x, flat)

kernel_name = 'standalone__paged_block_table_kv_pagedattention__sampling'

def setup_inputs():

    _w = (lambda a: (lambda t: t.to(torch.bfloat16) if t.is_floating_point() else t)(torch.as_tensor(a)))
    B, Hq, Hkv, Sq, Skv, D = 32, 32, 8, 4, 2048, 128
    bs = 16
    nbps = max(1, Skv // bs)
    num_phys = B * nbps + 4
    bt = torch.randperm(num_phys)[: B * nbps].reshape(B, nbps).to(torch.int64)
    cl = (nbps * bs - (torch.arange(1, B + 1, dtype=torch.int64) * 2654435761) % max(1, nbps * bs // 2)).to(torch.int64)
    return {
        "q": _w((lambda *s: torch.randn(*s, dtype=torch.bfloat16) * 0.8)(B, Hq, Sq, D)),
        "k_cache": _w((lambda *s: torch.randn(*s, dtype=torch.bfloat16) * 0.8)(num_phys, bs, Hkv, D)),
        "v_cache": _w((lambda *s: torch.randn(*s, dtype=torch.bfloat16) * 0.05)(num_phys, bs, Hkv, D)),
        "block_table": _w(bt),
        "context_lens": _w(cl),
    }

def reference(q, k_cache, v_cache, block_table, context_lens):
    B, Hq, Sq, D = q.shape
    bs = k_cache.shape[1]
    Hkv = k_cache.shape[2]
    nbps = block_table.shape[1]
    Skv = nbps * bs
    bt = block_table.reshape(-1)
    k = (lambda x, *d: x.permute(*d))(k_cache[bt].reshape(B, Skv, Hkv, D), 0, 2, 1, 3)
    v = (lambda x, *d: x.permute(*d))(v_cache[bt].reshape(B, Skv, Hkv, D), 0, 2, 1, 3)
    g = Hq // Hkv
    qg = q.reshape(B, Hkv, g, Sq, D)
    scores = torch.einsum("bhgqd,bhkd->bhgqk", qg, k) * (D ** -0.5)
    pos = torch.arange(Skv)
    msk = pos[None, :] < context_lens[:, None]
    scores = torch.where(msk[:, None, None, None, :], scores, -1e9)
    p = _softmax(scores, axis=-1)
    out = torch.einsum("bhgqk,bhkd->bhgqd", p, v)
    return out.reshape(B, Hq, Sq, D)
```

```python
import asmlib
name="t_tr"
o=[]
A=o.append
A('.amdgcn_target "amdgcn-amd-amdhsa--gfx950"')
A(asmlib.head(name))
A("""
s_load_dwordx2 s[12:13], s[0:1], 56
v_lshlrev_b32 v1, 6, v0
v_lshlrev_b32 v2, 5, v0
s_mov_b32 s4, 0x00010000
""")
for i in range(16):
    A(f"v_add_u32 v3, {2*i}, v2")
    A("v_add_u32 v4, 1, v3")
    A("v_lshl_or_b32 v3, v4, 16, v3")
    A(f"ds_write_b32 v1, v3 offset:{4*i}")
A("""
s_waitcnt lgkmcnt(0)
s_mov_b32 s36, s12
s_mov_b32 s37, s13
s_mov_b32 s38, 0x100000
s_mov_b32 s39, 0x20000
v_lshrrev_b32 v5, 2, v0     ; l>>2 = 4g + r
v_and_b32 v6, 3, v0
v_lshlrev_b32 v5, 8, v5
v_lshl_add_u32 v5, v6, 3, v5
ds_read_b64_tr_b16 v[8:9], v5
ds_read_b64_tr_b16 v[10:11], v5 offset:32
s_waitcnt lgkmcnt(0)
v_lshlrev_b32 v7, 4, v0
buffer_store_dwordx4 v[8:11], v7, s[36:39], 0 offen
v_mov_b32 v12, v0
v_add_u32 v13, 100, v0
s_nop 1
v_permlane16_swap_b32 v12, v13
v_mov_b32 v14, v0
v_add_u32 v15, 100, v0
s_nop 1
v_permlane32_swap_b32 v14, v15
s_nop 1
buffer_store_dwordx4 v[12:15], v7, s[36:39], 0 offen offset:1024
s_waitcnt vmcnt(0)
s_endpgm
""")
A(asmlib.kd(name, 32))
asmlib.build("\n".join(o), [(name,32,102,64)], "t_tr")
```

```python
import asmlib, sys
def gen(name, w, shape, pol='nt', op='buffer'):
    o = []
    A = o.append
    A(asmlib.head(name))
    A("s_cmp_ge_u32 s2, 256\ns_cbranch_scc1 L_end_" + name)
    A("s_load_dwordx4 s[4:7], s[0:1], 8")
    A("s_load_dwordx4 s[8:11], s[0:1], 24")
    A("s_load_dwordx2 s[12:13], s[0:1], 56")
    A("s_memrealtime s[40:41]")
    A("s_lshr_b32 s15, s2, 3")
    A("s_and_b32 s17, s2, 7")
    A("s_waitcnt lgkmcnt(0)")
    A("s_lshl_b32 s19, s15, 2")
    A("s_load_dword s20, s[10:11], s19")
    A("s_mov_b32 s24, s4\ns_mov_b32 s25, s5\ns_mov_b32 s26, 134348800\ns_mov_b32 s27, 0x20000")
    A("s_mov_b32 s28, s6\ns_mov_b32 s29, s7\ns_mov_b32 s30, 134348800\ns_mov_b32 s31, 0x20000")
    A("s_mov_b32 s32, s8\ns_mov_b32 s33, s9\ns_mov_b32 s34, 16384\ns_mov_b32 s35, 0x20000")
    A("s_mov_b32 s36, s12\ns_mov_b32 s37, s13\ns_mov_b32 s38, 0x1000000\ns_mov_b32 s39, 0x20000")
    A("v_lshlrev_b32 v2, 2, v0")
    A("s_lshl_b32 s21, s15, 9")
    A("buffer_load_dword v3, v2, s[32:35], s21 offen")
    A("buffer_load_dword v14, v2, s[32:35], s21 offen offset:256")
    A("s_lshl_b32 s22, s17, 8")
    for e in range(4):
        if shape == 'r4c':
            A("v_lshrrev_b32 v4, 4, v0\nv_and_b32 v5, 15, v0")
            A(f"v_add_u32 v4, {4*e}, v4\nv_lshlrev_b32 v4, 11, v4\nv_lshl_add_u32 v{16+e}, v5, 4, v4")
        elif shape == 'r4s':
            A("v_lshrrev_b32 v4, 4, v0\nv_and_b32 v5, 15, v0")
            A(f"v_lshlrev_b32 v4, 2, v4\nv_add_u32 v4, {e}, v4\nv_lshlrev_b32 v4, 11, v4\nv_lshl_add_u32 v{16+e}, v5, 4, v4")
        elif shape == 'r8':
            A("v_lshrrev_b32 v4, 3, v0\nv_and_b32 v5, 7, v0")
            A(f"v_add_u32 v4, {8*(e>>1)}, v4\nv_lshlrev_b32 v4, 11, v4\nv_lshl_add_u32 v{16+e}, v5, 4, v4\nv_add_u32 v{16+e}, {128*(e&1)}, v{16+e}")
        elif shape == 'r8b':
            A("v_lshrrev_b32 v4, 3, v0\nv_and_b32 v5, 7, v0")
            A(f"v_and_b32 v6, 1, v4\nv_xor_b32 v6, {e&1}, v6\nv_lshlrev_b32 v6, 7, v6")
            A(f"v_add_u32 v4, {8*(e>>1)}, v4\nv_lshlrev_b32 v4, 11, v4\nv_lshl_add_u32 v{16+e}, v5, 4, v4\nv_add_u32 v{16+e}, v6, v{16+e}")
        A(f"v_add_u32 v{16+e}, s22, v{16+e}")
    A("s_waitcnt lgkmcnt(0)")
    A("s_add_u32 s20, s20, 15\ns_lshr_b32 s20, s20, 4")
    A("s_mov_b32 s21, 0\ns_mov_b32 s44, 0")
    A("s_waitcnt vmcnt(0)")
    A(f"L_loop_{name}:")
    A("s_cmp_ge_u32 s21, s20\ns_cbranch_scc1 L_done_" + name)
    A("v_readlane_b32 s22, v3, s21\nv_readlane_b32 s47, v14, s21")
    A("s_cmp_ge_u32 s21, 64\ns_cselect_b32 s22, s47, s22\ns_lshl_b32 s23, s22, 15")
    order = [(0,0),(0,1),(0,2),(0,3),(1,0),(1,1),(1,2),(1,3)]
    if name.endswith("kv"): order = [(0,0),(1,0),(0,1),(1,1),(0,2),(1,2),(0,3),(1,3)]
    for i, (t, e) in enumerate(order):
        A(f"s_add_u32 m0, s44, {i*1024}")
        A(f"s_waitcnt vmcnt({w-1})")
        A(f"buffer_load_dwordx4 v{16+e}, {'s[24:27]' if t == 0 else 's[28:31]'}, s23 offen {pol} lds")
    A("s_add_u32 s44, s44, 8192\ns_and_b32 s44, s44, 0xffff")
    A("s_add_u32 s21, s21, 1")
    A(f"s_branch L_loop_{name}")
    A("L_done_" + name + ":")
    A("s_waitcnt vmcnt(0)")
    A("s_memrealtime s[42:43]")
    A("s_lshl_b32 s22, s2, 5")
    A("s_waitcnt lgkmcnt(0)")
    A("v_mov_b32 v10, s40\nv_mov_b32 v11, s41\nv_mov_b32 v12, s40\nv_mov_b32 v13, s41\nv_mov_b32 v9, 0")
    A("v_mov_b32 v20, s42\nv_mov_b32 v21, s43\nv_mov_b32 v22, s42\nv_mov_b32 v23, s43")
    A("s_mov_b64 exec, 1")
    A("buffer_store_dwordx4 v[10:13], v9, s[36:39], s22 offen")
    A("buffer_store_dwordx4 v[20:23], v9, s[36:39], s22 offen offset:16")
    A("L_end_" + name + ":")
    A("s_endpgm")
    A(asmlib.kd(name, 32))
    return "\n".join(o), (name, 32, 102, 64)
variants = [(f"l4_{p.replace(' ','')}_w{w}", w, 'r4c', p) for p in ('nt', 'sc1 nt', 'sc0 sc1 nt', 'sc0 nt') for w in (28, 40)]
asm = '.amdgcn_target "amdgcn-amd-amdhsa--gfx950"\n'
ks = []
for v in variants:
    a, k = gen(*v); asm += a + "\n"; ks.append(k)
asmlib.build(asm, ks, "ld4")
open("run_ld4.sh", "w").write("G=${G:-64}\nfor n in " + " ".join(v[0] for v in variants) + "; do ./bench/bench bench/ld4.co $n:$G:64:90000@$G -tsw 4 -it 8 -raw -len 2048 > bench/r3_$n.txt; python3 bench/ana2.py bench/r3_$n.txt | sed 's/np.float64//g; s/max.*//'; done\n")
print(len(variants))
```

```python
import asmlib, sys
def gen(name, w, mode, d=12, half=False):
    o = []
    A = o.append
    A(asmlib.head(name))
    A("s_cmp_ge_u32 s2, 256\ns_cbranch_scc1 L_end_" + name)
    A("s_load_dwordx4 s[4:7], s[0:1], 8")
    A("s_load_dwordx4 s[8:11], s[0:1], 24")
    A("s_load_dwordx2 s[12:13], s[0:1], 56")
    A("s_memrealtime s[40:41]")
    A("s_lshr_b32 s15, s2, 3")
    A("s_and_b32 s17, s2, 7")
    A("s_waitcnt lgkmcnt(0)")
    A("s_mov_b32 s24, s4\ns_mov_b32 s25, s5\ns_mov_b32 s26, 134348800\ns_mov_b32 s27, 0x20000")
    A("s_mov_b32 s28, s6\ns_mov_b32 s29, s7\ns_mov_b32 s30, 134348800\ns_mov_b32 s31, 0x20000")
    A("s_mov_b32 s32, s8\ns_mov_b32 s33, s9\ns_mov_b32 s34, 16384\ns_mov_b32 s35, 0x20000")
    A("s_mov_b32 s36, s12\ns_mov_b32 s37, s13\ns_mov_b32 s38, 0x1000000\ns_mov_b32 s39, 0x20000")
    A("v_lshlrev_b32 v2, 2, v0")
    A("s_lshl_b32 s21, s15, 9")
    A("buffer_load_dword v3, v2, s[32:35], s21 offen")
    A("buffer_load_dword v14, v2, s[32:35], s21 offen offset:256")
    A("s_lshl_b32 s22, s17, 8")
    if mode in ('A', 'R'):
        for e in range(4):
            A("v_lshrrev_b32 v4, 4, v0\nv_and_b32 v5, 15, v0")
            A(f"v_add_u32 v4, {4*e}, v4\nv_lshlrev_b32 v4, 11, v4\nv_lshl_add_u32 v{16+e}, v5, 4, v4")
            A(f"v_add_u32 v{16+e}, s22, v{16+e}")
    else:
        A("v_lshlrev_b32 v16, 4, v0")
    A("s_mov_b32 s21, 0\ns_mov_b32 s44, 0")
    A("s_waitcnt vmcnt(0)")
    NB = 96
    A(f"L_loop_{name}:")
    if mode in ('A', 'R'):
        A(f"s_cmp_ge_u32 s21, {NB}\ns_cbranch_scc1 L_done_" + name)
        if mode == 'R':
            A((f"s_lshr_b32 s45, s17, 2\ns_mul_i32 s45, s45, {d}\n" if half else f"s_mul_i32 s45, s17, {d}\n") + f"s_add_u32 s45, s45, s21\ns_sub_u32 s46, s45, {NB}\ns_cmp_ge_u32 s45, {NB}\ns_cselect_b32 s45, s46, s45")
        else:
            A("s_mov_b32 s45, s21")
        A("v_readlane_b32 s22, v3, s45\nv_readlane_b32 s47, v14, s45")
        A("s_cmp_ge_u32 s45, 64\ns_cselect_b32 s22, s47, s22\ns_lshl_b32 s23, s22, 15")
        for i in range(8):
            A(f"s_add_u32 m0, s44, {i*1024}")
            A(f"s_waitcnt vmcnt({w-1})")
            A(f"buffer_load_dwordx4 v{16+(i&3)}, {'s[24:27]' if i < 4 else 's[28:31]'}, s23 offen nt lds")
        A("s_add_u32 s44, s44, 8192\ns_and_b32 s44, s44, 0xffff")
        A("s_add_u32 s21, s21, 1")
    else:
        A(f"s_cmp_ge_u32 s21, {NB//8}\ns_cbranch_scc1 L_done_" + name)
        A("s_lshl_b32 s45, s21, 3\ns_add_u32 s45, s45, s17")
        A("v_readlane_b32 s22, v3, s45\nv_readlane_b32 s47, v14, s45")
        A("s_cmp_ge_u32 s45, 64\ns_cselect_b32 s22, s47, s22\ns_lshl_b32 s23, s22, 15")
        for i in range(64):
            t, k = (i >> 5, i & 31)
            A(f"s_add_u32 s46, s23, {k*1024}")
            A(f"s_mov_b32 m0, {(i & 31)*1024}")
            A(f"s_waitcnt vmcnt({w-1})")
            A(f"buffer_load_dwordx4 v16, {'s[24:27]' if t == 0 else 's[28:31]'}, s46 offen nt lds")
        A("s_add_u32 s21, s21, 1")
    A(f"s_branch L_loop_{name}")
    A("L_done_" + name + ":")
    A("s_waitcnt vmcnt(0)")
    A("s_memrealtime s[42:43]")
    A("s_lshl_b32 s22, s2, 5")
    A("s_waitcnt lgkmcnt(0)")
    A("v_mov_b32 v10, s40\nv_mov_b32 v11, s41\nv_mov_b32 v12, s40\nv_mov_b32 v13, s41\nv_mov_b32 v9, 0")
    A("v_mov_b32 v20, s42\nv_mov_b32 v21, s43\nv_mov_b32 v22, s42\nv_mov_b32 v23, s43")
    A("s_mov_b64 exec, 1")
    A("buffer_store_dwordx4 v[10:13], v9, s[36:39], s22 offen")
    A("buffer_store_dwordx4 v[20:23], v9, s[36:39], s22 offen offset:16")
    A("L_end_" + name + ":")
    A("s_endpgm")
    A(asmlib.kd(name, 32))
    return "\n".join(o), (name, 32, 102, 64)
variants = [("l6_A_w22", 22, 'A')] + [(f"l6_H{d}_w22", 22, 'R', d, True) for d in (1, 2, 3, 4, 8, 24)] + [(f"l6_R{d}_w22", 22, 'R', d, False) for d in (1, 2, 12)]
asm = '.amdgcn_target "amdgcn-amd-amdhsa--gfx950"\n'
ks = []
for v in variants:
    a, k = gen(*v); asm += a + "\n"; ks.append(k)
asmlib.build(asm, ks, "ld6")
open("run_ld6.sh", "w").write("./bench/bench bench/ld6.co " + "+".join(f"{v[0]}:256:64:90000@256" for v in variants) + " -tsw 4 -it 21\n")
```
